```python
import torch

def _softmax(x, axis=-1):
    return torch.softmax(x, dim=axis)
def _gelu(x):
    return torch.nn.functional.gelu(x, approximate="tanh")
def _silu(x):
    return torch.nn.functional.silu(x)
def _sigmoid(x):
    return torch.sigmoid(x)
def _layernorm(x, axis=-1, eps=1e-5):
    m = x.mean(dim=axis, keepdim=True)
    v = x.var(dim=axis, keepdim=True, unbiased=False)
    return (x - m) / torch.sqrt(v + eps)
def _scatter_add(tgt, idx, src, axis=0):
    return tgt.clone().index_add_(axis, idx, src)
def _segment_sum(src, seg, n):
    out = torch.zeros((n,) + src.shape[1:], dtype=src.dtype)
    return out.index_add_(0, seg, src)
def _pad(x, pw):
    flat = tuple(v for pair in reversed(pw) for v in pair)
    return torch.nn.functional.pad(x, flat)

kernel_name = 'standalone__gqa_softmax__near_ridge'

def setup_inputs():

    _w = (lambda a: (lambda t: t.to(torch.bfloat16) if t.is_floating_point() else t)(torch.as_tensor(a)))
    B, Hq, Hkv, Sq, Sk, D = 8, 32, 8, 64, 1024, 128
    return {
        "q": _w((lambda *s: torch.randn(*s, dtype=torch.bfloat16) * 0.8)(B, Hq, Sq, D)),
        "k": _w((lambda *s: torch.randn(*s, dtype=torch.bfloat16) * 0.8)(B, Hkv, Sk, D)),
        "v": _w((lambda *s: torch.randn(*s, dtype=torch.bfloat16) * 0.05)(B, Hkv, Sk, D)),
    }

def reference(q, k, v):
    B, Hq, Sq, D = q.shape
    Hkv = k.shape[1]
    rep = Hq // Hkv
    k = (lambda x, n, axis: torch.repeat_interleave(x, n, dim=axis))(k, rep, axis=1)
    v = (lambda x, n, axis: torch.repeat_interleave(x, n, dim=axis))(v, rep, axis=1)
    scale = D ** -0.5
    scores = torch.einsum("bhqd,bhkd->bhqk", q, k) * scale
    p = _softmax(scores, axis=-1)
    return torch.einsum("bhqk,bhkd->bhqd", p, v)
```

```python
KN = "standalone__gqa_softmax__near_ridge_kernel"
HEADER = """; Kernarg layout for this problem (48 bytes, ptrs only, base s[0:1]):
; @launch grid=({grid},1,1) block=({block},1,1) lds={lds}
.amdgcn_target "amdgcn-amd-amdhsa--gfx950"
.text
.globl {kn}
.p2align 8
.type {kn},@function
{kn}:
"""
FOOTER = """.section .rodata,"a"
.p2align 6
.amdhsa_kernel {kn}
  .amdhsa_next_free_vgpr {nvgpr}
  .amdhsa_next_free_sgpr 102
  .amdhsa_accum_offset {accum}
  .amdhsa_group_segment_fixed_size 0
  .amdhsa_kernarg_size 48
  .amdhsa_user_sgpr_count 2
  .amdhsa_user_sgpr_kernarg_segment_ptr 1
  .amdhsa_system_sgpr_workgroup_id_x 1
  .amdhsa_float_denorm_mode_32 3
.end_amdhsa_kernel
"""
class Asm:
    def __init__(self):
        self.l = []
    def __call__(self, s):
        for x in s.strip("\n").split("\n"):
            self.l.append("    " + x.strip())
    def label(self, n):
        self.l.append(n + ":")
    def c(self, s):
        self.l.append("    ; " + s)
    def text(self, grid, block, lds, nvgpr, accum):
        return HEADER.format(grid=grid, block=block, lds=lds, kn=KN) + "\n".join(self.l) + "\n" + FOOTER.format(kn=KN, nvgpr=nvgpr, accum=accum)
```

```python
import re
def regs(tok):
    tok = tok.strip().lstrip('-')
    m = re.fullmatch(r'([vas])\[(\d+):(\d+)\]', tok)
    if m: return [(m.group(1), i) for i in range(int(m.group(2)), int(m.group(3))+1)]
    m = re.fullmatch(r'([vas])(\d+)', tok)
    if m: return [(m.group(1), int(m.group(2)))]
    if tok == 'vcc': return [('s', 'vcc')]
    if tok == 'm0': return [('s', 'm0')]
    if tok == 'exec': return [('s', 'exec')]
    return []
TRANS = ('v_exp_f32', 'v_rcp_f32', 'v_log_f32', 'v_rsq_f32', 'v_sqrt_f32')
def parse(line):
    line = line.split(';')[0].strip()
    if not line or line.endswith(':') or line.startswith('.'): return None
    p = line.split(None, 1)
    op = p[0]; ops = [x.strip() for x in p[1].split(',')] if len(p) > 1 else []
    ops = [o.split()[0] if o else o for o in ops]
    d = dict(op=op, dst=[], src=[], line=line, ws=1, A=[], B=[], C=[])
    if op == 's_nop': d['ws'] = int(ops[0]) + 1
    if op.startswith('v_mfma'):
        d['kind'] = 'mfma'; d['dst'] = regs(ops[0]); d['A'] = regs(ops[1]); d['B'] = regs(ops[2]); d['C'] = regs(ops[3])
        d['src'] = d['A'] + d['B'] + d['C']; d['pass'] = 8 if '32x32' in op else 4
    elif op.startswith('v_'):
        d['kind'] = 'valu'
        d['dst'] = regs(ops[0]); d['src'] = sum((regs(o) for o in ops[1:]), [])
        if op.startswith('v_permlane'): d['dst'] = regs(ops[0]) + regs(ops[1]); d['src'] = list(d['dst'])
        if op.startswith(('v_fmac', 'v_pk_fmac')): d['src'] += d['dst']
        if op.startswith('v_cndmask') and len(ops) == 3: d['src'] += [('s', 'vcc')]
    elif op.startswith('ds_'):
        d['kind'] = 'ds'
        if 'read' in op: d['dst'] = regs(ops[0]); d['src'] = regs(ops[1])
        else: d['src'] = sum((regs(o) for o in ops), [])
    elif op.startswith('buffer_'):
        d['kind'] = 'vmem'
        if ' lds' in line: d['src'] = sum((regs(o) for o in ops), []) + [('s', 'm0')]; d['dma'] = 1
        elif 'load' in op and 'atomic' not in op: d['dst'] = regs(ops[0]); d['src'] = sum((regs(o) for o in ops[1:]), [])
        else: d['src'] = sum((regs(o) for o in ops), []); d['store'] = regs(ops[0])
    elif op.startswith('s_'):
        d['kind'] = 'salu'
        if ops and not op.startswith(('s_cmp', 's_cbranch', 's_branch', 's_waitcnt', 's_nop', 's_barrier', 's_setprio', 's_endpgm', 's_sleep')):
            d['dst'] = regs(ops[0]); d['src'] = sum((regs(o) for o in ops[1:]), [])
        else: d['src'] = sum((regs(o) for o in ops), [])
    else:
        raise Exception("unknown " + line)
    return d
def fix(lines, verbose=True):
    out = []
    for l in lines:
        c = parse(l)
        if c:
            e = check(out[-60:] + [l], last_only=True)
            if e:
                n = max(x[0] for x in e)
                if verbose: print("FIX nop", n, "before", l.strip(), "|", e[0][1])
                while n > 0:
                    k = min(n, 16); out.append(f"    s_nop {k-1}"); n -= k
        out.append(l)
    return out
def check(lines, last_only=False):
    ins = [x for x in (parse(l) for l in lines) if x]
    errs = []
    for j, c in enumerate(ins):
        if last_only and j != len(ins)-1: continue
        dist = 0
        for i in range(j-1, max(-1, j-24), -1):
            p = ins[i]
            need = 0
            pd = set(p['dst']); cs = set(c['src']); cd = set(c['dst'])
            if p['kind'] == 'valu':
                vd = {r for r in pd if r[0] in 'va'}; sd = {r for r in pd if r[0] == 's'}
                if c['kind'] == 'mfma' and vd & cs: need = 2
                if c['op'].startswith('v_permlane') and vd & cs: need = 2
                if c['op'].startswith(('v_readfirstlane', 'v_readlane')) and vd & cs: need = max(need, 1)
                if p['op'].startswith(TRANS) and c['kind'] in ('valu', 'mfma') and not c['op'].startswith(TRANS) and vd & cs: need = max(need, 1)
                if '_dpp' in c['op'] and vd & cs: need = 2
                if c['kind'] == 'valu' and sd & cs: need = max(need, 2)
                if c['kind'] == 'vmem' and sd & cs: need = 5
            if p['kind'] == 'salu' and ('s', 'm0') in pd and c.get('dma'): need = 1
            if p['kind'] == 'mfma':
                big = 12 if p['pass'] == 8 else 8
                if c['kind'] == 'mfma':
                    if pd & (set(c['A']) | set(c['B'])): need = big
                    if pd & set(c['C']):
                        if c['C'] != p['dst'] or c['pass'] != p['pass']: need = max(need, big - 2)
                    elif pd & cd: need = max(need, big)
                else:
                    if pd & (cs | cd): need = big
                    if c['kind'] == 'valu' and set(p['C']) & cd: need = max(need, 7 if p['pass'] == 8 else 3)
            if p.get('store') and len(p['store']) >= 3 and set(p['store']) & cd: need = max(need, 2)
            if p['kind'] == 'ds' and 'write_b128' in p['op'] and set(p['src']) & cd and c['kind'] == 'valu': need = max(need, 2)
            if need > dist:
                errs.append((need-dist, f"need {need} have {dist}: [{p['line']}] -> [{c['line']}]"))
            dist += p['ws']
    return errs
```

```python
import sys, struct, math
from common import *
import hazard
def f2u(x): return struct.unpack('<I', struct.pack('<f', x))[0]

RING = 36864; QSZ = 16384
def gen(flags="nt", stamps=0, T=8.0, oflags=""):
    a = Asm()
    NT = 8
    vKa = [2+i for i in range(8)]; vVa = [10+i for i in range(4)]; vKd = [14+i for i in range(4)]; vVd = 18
    vmc = [19, 20]; vl = [21, 22]; val = [23, 24]; vmx = [25, 26]; vt = [27, 28, 29, 30, 31]
    P = lambda par, qb, s: 32 + par*16 + qb*8 + s*4
    S = lambda par, qb: 64 + par*32 + qb*16
    O = lambda db, qb: 128 + (db*2+qb)*16
    Qf = lambda qb, st: qb*32 + st*4
    Kf = lambda st: 64 + st*4
    Vf = lambda db, s: 96 + (db*2+s)*4
    vr = lambda b, n: f"v[{b}:{b+n-1}]"
    ar = lambda b, n: f"a[{b}:{b+n-1}]"
    sK, sV, sQ, sO = "s[16:19]", "s[20:23]", "s[24:27]", "s[28:31]"
    sRing, sC, sT, sFlag, sRet, sOff = "s32", "s33", "s34", "s35", "s36", "s37"
    nst = [0]
    def stamp():
        if stamps:
            a(f"s_memrealtime s[{60+2*nst[0]}:{61+2*nst[0]}]"); nst[0] += 1
    kslot = lambda j: 0 if j == 0 else (2*j-1) % 4
    vslot = lambda j: (2*j+2) % 4
    def dma(kind, t):
        out = []
        slot = kslot(t) if kind == "K" else vslot(t)
        for half in range(2):
            out.append(f"s_add_u32 m0, {sRing}, {slot*8192 + half*4096}\ns_movk_i32 {sOff}, {hex((t*8192 + half*4096) & 0xffff)}" if False else
                       f"s_add_u32 m0, {sRing}, {slot*8192 + half*4096}\ns_mov_b32 {sOff}, {t*8192 + half*4096}")
            for j in range(4):
                va = vKd[j] if kind == "K" else vVd
                out.append(f"buffer_load_dwordx4 v{va}, {sK if kind=='K' else sV}, {sOff} offen offset:{j*1024} {flags} lds")
        return out
    def kreads(t):
        return [f"ds_read_b128 {ar(Kf(st),4)}, v{vKa[st]} offset:{kslot(t)*8192}" for st in range(8)]
    def vreads(t):
        out = []
        for s in range(2):
            for db in range(4):
                for p in range(2):
                    out.append(f"ds_read_b64_tr_b16 {ar(Vf(db,s)+2*p,2)}, v{vVa[db]} offset:{vslot(t)*8192 + (16*s+8*p)*256}")
        return out
    def qk(t):
        par = t & 1
        return [f"v_mfma_f32_32x32x16_bf16 {vr(S(par,qb),16)}, {ar(Kf(st),4)}, {ar(Qf(qb,st),4)}, {'0' if st==0 else vr(S(par,qb),16)}"
                for qb in range(2) for st in range(8)]
    def pv(t, last=False):
        par = t & 1
        order = [(qb, s, db) for qb in range(2) for s in range(2) for db in range(4)]
        if last:
            order = [(qb, s, db) for (qb, db) in [(0,2),(0,3),(1,0),(1,1),(1,2),(1,3),(0,0),(0,1)] for s in range(2)]
        return [f"v_mfma_f32_32x32x16_bf16 {vr(O(db,qb),16)}, {ar(Vf(db,s),4)}, {vr(P(par,qb,s),4)}, {'0' if (t==0 and s==0) else vr(O(db,qb),16)}"
                for (qb, s, db) in order]
    def maxes(t, qb):
        b = S(t & 1, qb); m = vmx[qb]
        out = [f"v_max3_f32 v{m}, v{b}, v{b+1}, v{b+2}"]
        for i in range(3, 15, 2): out.append(f"v_max3_f32 v{m}, v{m}, v{b+i}, v{b+i+1}")
        out.append(f"v_max_f32 v{m}, v{m}, v{b+15}")
        return out
    def soft(t, qb):
        par = t & 1; b = S(par, qb); out = []
        for i in range(0, 16, 2):
            out.append(f"v_fma_f32 v{b+i}, v{b+i}, {sC}, -v{vmc[qb]}")
            out.append(f"v_fma_f32 v{b+i+1}, v{b+i+1}, {sC}, -v{vmc[qb]}")
            if i >= 2:
                j = i-2
                out.append(f"v_add_f32 v{vl[qb]}, v{vl[qb]}, v{b+j}")
            out.append(f"v_exp_f32 v{b+i}, v{b+i}")
            if i >= 2:
                out.append(f"v_add_f32 v{vl[qb]}, v{vl[qb]}, v{b+j+1}")
            out.append(f"v_exp_f32 v{b+i+1}, v{b+i+1}")
            if i >= 2:
                out.append(f"v_cvt_pk_bf16_f32 v{P(par,qb,0)+j//2}, v{b+j}, v{b+j+1}")
        j = 14
        out.append(f"v_add_f32 v{vl[qb]}, v{vl[qb]}, v{b+j}")
        out.append(f"v_add_f32 v{vl[qb]}, v{vl[qb]}, v{b+j+1}")
        out.append(f"v_cvt_pk_bf16_f32 v{P(par,qb,0)+j//2}, v{b+j}, v{b+j+1}")
        return out
    def cost(s):
        c = 0
        for x in s.split("\n"):
            c += 2 if x.startswith("v_exp") else (0.5 if x.startswith("s_") else 1)
        return c
    def interleave(mf, streams, lead=0):
        items = []
        for (lst, f0, f1) in streams:
            tot = sum(cost(x) for x in lst) or 1; acc = 0
            for k, x in enumerate(lst):
                pos = f0 + (f1-f0) * acc / tot
                acc += cost(x)
                items.append((pos, len(items), x))
        items.sort()
        n = len(mf); k = 0
        for i, m in enumerate(mf):
            a(m)
            while k < len(items) and items[k][0] < (i+1)/n:
                a(items[k][2]); k += 1
        while k < len(items):
            a(items[k][2]); k += 1

    stamp()
    a("s_cmp_ge_u32 s2, 256\ns_cbranch_scc1 L_end")
    a("s_load_dwordx4 s[4:7], s[0:1], 0\ns_load_dwordx4 s[8:11], s[0:1], 16")
    if stamps: a("s_load_dwordx2 s[58:59], s[0:1], 40")
    a("v_lshrrev_b32 v1, 6, v0\nv_and_b32 v0, 63, v0\nv_readfirstlane_b32 s3, v1")
    a("s_and_b32 s12, s2, 7\ns_lshr_b32 s13, s2, 5\ns_lshl_b32 s13, s13, 3\ns_or_b32 s12, s12, s13")
    a("s_lshr_b32 s13, s2, 3\ns_and_b32 s13, s13, 3\ns_lshl_b32 s14, s12, 2\ns_or_b32 s13, s13, s14\ns_lshl_b32 s13, s13, 14")
    a("s_lshl_b32 s14, s12, 18\ns_lshl_b32 s15, s3, 16\ns_add_u32 s14, s14, s15")
    t0, t1, t2, t3 = vt[0], vt[1], vt[2], vt[3]
    a(f"v_lshrrev_b32 v{t0}, 4, v0\nv_and_b32 v{t1}, 15, v0\nv_lshlrev_b32 v{t2}, 8, v{t0}")
    for j in range(4):
        a(f"v_add_u32 v{t3}, {4*j}, v{t0}\nv_xor_b32 v{t3}, v{t3}, v{t1}\nv_lshl_add_u32 v{vKd[j]}, v{t3}, 4, v{t2}")
    a(f"v_lshlrev_b32 v{t3}, 2, v{t0}\nv_xor_b32 v{t3}, v{t3}, v{t1}\nv_lshl_add_u32 v{vVd}, v{t3}, 4, v{t2}")
    a(f"s_mul_i32 {sRing}, s3, {RING}\ns_add_u32 {sRing}, {sRing}, {QSZ}")
    a("s_lshl_b32 s38, s3, 12")
    a("s_mov_b32 s18, 65536\ns_mov_b32 s19, 0x20000\ns_mov_b32 s22, 65536\ns_mov_b32 s23, 0x20000")
    a("s_mov_b32 s26, 16384\ns_mov_b32 s27, 0x20000\ns_mov_b32 s30, 16384\ns_mov_b32 s31, 0x20000")
    a("s_mov_b32 m0, s38")
    a("s_waitcnt lgkmcnt(0)")
    a("s_add_u32 s24, s4, s13\ns_addc_u32 s25, s5, 0")
    a("s_add_u32 s16, s6, s14\ns_addc_u32 s17, s7, 0")
    for j in range(4):
        a(f"buffer_load_dwordx4 v{vKd[j]}, {sQ}, s38 offen offset:{j*1024} {flags} lds")
    for x in dma("K", 0): a(x)
    a("s_add_u32 s20, s8, s14\ns_addc_u32 s21, s9, 0")
    a("s_add_u32 s28, s10, s13\ns_addc_u32 s29, s11, 0")
    for x in dma("K", 1) + dma("V", 0) + dma("K", 2): a(x)
    stamp()
    a(f"v_and_b32 v{t0}, 31, v0\nv_lshrrev_b32 v{t1}, 5, v0\nv_and_b32 v{t2}, 15, v0\nv_xor_b32 v{t2}, v{t2}, v{t1}\nv_lshlrev_b32 v{t0}, 8, v{t0}")
    a("s_lshr_b32 s39, s3, 1\ns_lshl_b32 s39, s39, 13")
    for st in range(8):
        a(f"v_xor_b32 v{t3}, {2*st}, v{t2}\nv_lshl_add_u32 v{vKa[st]}, v{t3}, 4, v{t0}")
    a(f"v_bfe_u32 v{t0}, v0, 2, 2\nv_lshl_add_u32 v{t1}, v{t1}, 2, v{t0}\nv_lshlrev_b32 v{t1}, 8, v{t1}")
    a(f"v_and_b32 v{t2}, 3, v0\nv_lshl_add_u32 v{t1}, v{t2}, 3, v{t1}\nv_bfe_u32 v{t2}, v0, 4, 1\nv_lshl_add_u32 v{t1}, v{t2}, 5, v{t1}")
    a(f"v_add_u32 v{t1}, {sRing}, v{t1}")
    a("s_and_b32 s40, s3, 1\ns_lshl_b32 s40, s40, 1")
    a(f"v_xor_b32 v{t0}, s40, v{t0}")
    for db in range(4):
        a(f"v_xor_b32 v{t3}, {db}, v{t0}\nv_lshl_add_u32 v{vVa[db]}, v{t3}, 6, v{t1}")
    a(f"s_mov_b32 {sC}, {hex(f2u(128**-0.5 * math.log2(math.e)))}\ns_mov_b32 {sT}, {hex(f2u(T))}\ns_mov_b32 {sFlag}, 0")
    a(f"v_mov_b32 v{vl[0]}, 0\nv_mov_b32 v{vl[1]}, 0")
    for st in range(8):
        a(f"v_xor_b32 v{64+st}, s39, v{vKa[st]}")
        a(f"v_xor_b32 v{72+st}, 0x2000, v{64+st}")
        a(f"v_add_u32 v{vKa[st]}, {sRing}, v{vKa[st]}")
    a("s_waitcnt vmcnt(32)\ns_barrier")
    for qb in range(2):
        for st in range(8):
            a(f"ds_read_b128 {ar(Qf(qb,st),4)}, v{64+8*qb+st}")
    a("s_waitcnt vmcnt(24)")
    stamp()
    for x in kreads(0): a(x)
    a("s_waitcnt lgkmcnt(0)")
    interleave(qk(0), [(dma("V", 1), 0.0, 0.5), (["s_waitcnt vmcnt(24)"], 0.99, 1.0)])
    for x in kreads(1): a(x)
    a("s_nop 3")
    for x in maxes(0, 0) + maxes(0, 1): a(x)
    for qb in range(2):
        a(f"v_mov_b32 v{vt[qb]}, v{vmx[qb]}")
    a("s_nop 1")
    for qb in range(2):
        a(f"v_permlane32_swap_b32 v{vt[qb]}, v{vmx[qb]}")
    for qb in range(2):
        a(f"v_max_f32 v{vmx[qb]}, v{vmx[qb]}, v{vt[qb]}")
    for qb in range(2):
        a(f"v_mul_f32 v{vmc[qb]}, {sC}, v{vmx[qb]}")
    for x in soft(0, 0): a(x)
    issued = ["K0", "K1", "V0", "K2", "V1"]
    def vm_for(name):
        return 8 * (len(issued) - 1 - issued.index(name))
    for t in range(NT):
        a.c(f"phase A({t})")
        d = []
        if t + 3 < NT: d = dma("K", t+3); issued.append(f"K{t+3}")
        w = [f"s_waitcnt vmcnt({vm_for(f'V{t}')})"]
        if t + 1 < NT:
            a("s_waitcnt lgkmcnt(0)")
            interleave(qk(t+1), [(soft(t, 1), 0.0, 0.95), (d, 0.0, 0.4), (w + vreads(t), 0.42, 0.9)])
        else:
            sf = soft(t, 1)
            for x in sf[:20]: a(x)
            for x in w + vreads(t): a(x)
            for x in sf[20:]: a(x)
            stamp()
        a.c(f"phase B({t})")
        a("s_waitcnt lgkmcnt(0)")
        if t + 1 < NT:
            d = []
            if t + 2 < NT: d = dma("V", t+2); issued.append(f"V{t+2}")
            kr = []
            if t + 2 < NT: kr = [f"s_waitcnt vmcnt({vm_for(f'K{t+2}')})"] + kreads(t+2)
            chk = [f"v_fma_f32 v{vt[0]}, v{vmx[0]}, {sC}, -v{vmc[0]}",
                   f"v_fma_f32 v{vt[1]}, v{vmx[1]}, {sC}, -v{vmc[1]}",
                   f"v_max_f32 v{vt[0]}, v{vt[0]}, v{vt[1]}",
                   f"v_cmp_lt_f32 vcc, {sT}, v{vt[0]}\ns_cbranch_vccnz L_r1_{t+1}\nL_b1_{t+1}:"]
            v = maxes(t+1, 0) + maxes(t+1, 1) + chk + soft(t+1, 0)
            interleave(pv(t), [(v, 0.0, 1.0), (d, 0.0, 0.4), (kr, 0.5, 0.9)])
            a(f"s_cmp_lg_u32 {sFlag}, 0\ns_cbranch_scc1 L_r2_{t+1}")
            a.label(f"L_b2_{t+1}")
        else:
            m = pv(t, last=True)
            pre = []
            for qb in range(2): pre.append(f"v_mov_b32 v{vt[qb]}, v{vl[qb]}")
            pre.append(f"v_lshlrev_b32 v{vt[4]}, 4, v0")
            for qb in range(2): pre.append(f"v_permlane32_swap_b32 v{vt[qb]}, v{vl[qb]}")
            for qb in range(2): pre.append(f"v_add_f32 v{vl[qb]}, v{vl[qb]}, v{vt[qb]}")
            pre.append(f"v_cmp_gt_u32 vcc, 32, v0")
            pre.append(f"v_add_u32 v{vt[4]}, {sRing}, v{vt[4]}")
            pre.append(f"v_lshlrev_b32 v{vt[0]}, 3, v0")
            pre.append(f"v_cndmask_b32 v64, v{vmc[1]}, v{vmc[0]}, vcc")
            pre.append(f"v_cndmask_b32 v65, v{vl[1]}, v{vl[0]}, vcc")
            pre.append(f"v_add_u32 v{vt[0]}, {sRing}, v{vt[0]}")
            pre.append(f"ds_write_b64 v{vt[0]}, v[64:65] offset:32768")
            tiles = [(0,2),(0,3),(1,0),(1,1),(1,2),(1,3)]
            def wr(k):
                qb, db = tiles[k]; x = qb*2 + (db >> 1)
                return [f"ds_write_b128 v{vt[4]}, {vr(O(db,qb)+4*i,4)} offset:{(x-1)*8192 + (db&1)*4096 + i*1024}" for i in range(4)]
            for i, mm in enumerate(m):
                a(mm)
                if i < 4:
                    for x in pre[i*4:(i+1)*4]: a(x)
                elif i >= 5 and i % 2 == 1:
                    k = (i - 5) // 2
                    for x in wr(k): a(x)
    a.c("epilogue")
    a("s_waitcnt lgkmcnt(0)\ns_barrier")
    stamp()
    for x in (1, 2, 3):
        a(f"s_xor_b32 s40, s3, {x}\ns_mul_i32 s40, s40, {RING}\ns_add_u32 s{40+x}, s40, {QSZ}")
    a(f"v_and_b32 v{vt[0]}, 31, v0\nv_lshlrev_b32 v{vt[1]}, 3, v{vt[0]}\nv_lshlrev_b32 v{vt[2]}, 4, v0")
    for x in (1, 2, 3):
        a(f"v_add_u32 v{2+x}, s{40+x}, v{vt[1]}\nv_add_u32 v{6+x}, s{40+x}, v{vt[2]}")
    for x in (1, 2, 3):
        a(f"ds_read_b64 v[{10+2*x}:{11+2*x}], v{2+x} offset:{32768 + (x>>1)*256}")
    for x in (1, 2, 3):
        for i in range(8):
            a(f"ds_read_b128 {vr(32+(x-1)*32+4*i,4)}, v{6+x} offset:{(x-1)*8192 + i*1024}")
    a(f"s_lshr_b32 s40, s3, 1\ns_lshl_b32 s40, s40, 13\ns_and_b32 s44, s3, 1\ns_lshl_b32 s44, s44, 7\ns_add_u32 s40, s40, s44")
    a(f"v_lshlrev_b32 v{vt[0]}, 8, v{vt[0]}\nv_lshrrev_b32 v{vt[1]}, 5, v0\nv_lshl_add_u32 v{vt[0]}, v{vt[1]}, 4, v{vt[0]}")
    a("s_waitcnt lgkmcnt(15)")
    a("s_waitcnt lgkmcnt(15)")
    a(f"v_max3_f32 v2, v12, v14, v16\nv_max_f32 v2, v2, v{vmc[0]}")
    a(f"v_sub_f32 v10, v{vmc[0]}, v2\nv_sub_f32 v12, v12, v2\nv_sub_f32 v14, v14, v2\nv_sub_f32 v16, v16, v2")
    a("v_exp_f32 v10, v10\nv_exp_f32 v12, v12\nv_exp_f32 v14, v14\nv_exp_f32 v16, v16")
    a(f"v_mul_f32 v3, v10, v{vl[0]}\nv_fmac_f32 v3, v12, v13\nv_fmac_f32 v3, v14, v15\nv_fmac_f32 v3, v16, v17")
    a("v_rcp_f32 v3, v3\ns_nop 0")
    a("v_mul_f32 v10, v10, v3\nv_mul_f32 v12, v12, v3\nv_mul_f32 v14, v14, v3\nv_mul_f32 v16, v16, v3")
    own = [O(0,0)+i for i in range(16)] + [O(1,0)+i for i in range(16)]
    for i in range(0, 32, 2):
        a(f"v_pk_mul_f32 {vr(own[i],2)}, {vr(own[i],2)}, v[10:11] op_sel_hi:[1,0]")
    for x in (1, 2, 3):
        a(f"s_waitcnt lgkmcnt({min(15, (3-x)*8)})")
        for i in range(0, 32, 2):
            a(f"v_pk_fma_f32 {vr(own[i],2)}, {vr(32+(x-1)*32+i,2)}, v[{10+2*x}:{11+2*x}], {vr(own[i],2)} op_sel_hi:[1,0,1]")
    for i in range(0, 32, 2):
        a(f"v_cvt_pk_bf16_f32 v{32+i//2}, v{own[i]}, v{own[i+1]}")
    a("s_nop 0")
    for g in range(4):
        a(f"v_permlane32_swap_b32 v{32+4*g}, v{34+4*g}\nv_permlane32_swap_b32 v{33+4*g}, v{35+4*g}")
    for g in range(4):
        a(f"buffer_store_dwordx4 {vr(32+4*g,4)}, v{vt[0]}, {sO}, s40 offen offset:{g*32} {oflags}")
    if stamps:
        stamp()
        a("s_waitcnt vmcnt(0)")
        stamp()
        a("s_waitcnt lgkmcnt(0)")
        NS = nst[0]
        a(f"s_lshl_b32 s44, s2, 2\ns_add_u32 s44, s44, s3\ns_mul_i32 s44, s44, {NS*8}")
        a("s_mov_b32 s12, s58\ns_mov_b32 s13, s59\ns_mov_b32 s14, 0x100000\ns_mov_b32 s15, 0x20000")
        a("v_mov_b32 v5, 0\ns_mov_b64 exec, 1")
        for s in range(NS):
            a(f"v_mov_b32 v6, s{60+2*s}\nv_mov_b32 v7, s{61+2*s}")
            a(f"buffer_store_dwordx2 v[6:7], v5, s[12:15], s44 offen offset:{8*s}\ns_nop 1")
        print("stamps", NS)
    a.label("L_end")
    a("s_endpgm")
    a.l = hazard.fix(a.l)
    for t in range(1, NT):
        a.label(f"L_r1_{t}"); a(f"s_mov_b32 {sRet}, {t}\ns_branch L_r1")
        a.label(f"L_r2_{t}"); a(f"s_mov_b32 {sRet}, {t}\ns_branch L_r2")
    a.label("L_r1")
    for qb in range(2): a(f"v_mov_b32 v{vt[qb]}, v{vmx[qb]}")
    a("s_nop 1")
    for qb in range(2): a(f"v_permlane32_swap_b32 v{vt[qb]}, v{vmx[qb]}")
    for qb in range(2): a(f"v_max_f32 v{vmx[qb]}, v{vmx[qb]}, v{vt[qb]}")
    for qb in range(2): a(f"v_mul_f32 v{vmx[qb]}, {sC}, v{vmx[qb]}")
    for qb in range(2): a(f"v_max_f32 v{vmx[qb]}, v{vmx[qb]}, v{vmc[qb]}")
    for qb in range(2): a(f"v_sub_f32 v{val[qb]}, v{vmc[qb]}, v{vmx[qb]}")
    for qb in range(2): a(f"v_exp_f32 v{val[qb]}, v{val[qb]}")
    for qb in range(2): a(f"v_mov_b32 v{vmc[qb]}, v{vmx[qb]}")
    for qb in range(2): a(f"v_mul_f32 v{vl[qb]}, v{vl[qb]}, v{val[qb]}")
    a(f"s_mov_b32 {sFlag}, 1")
    for t in range(1, NT):
        a(f"s_cmp_eq_u32 {sRet}, {t}\ns_cbranch_scc1 L_b1_{t}")
    a("s_endpgm")
    a.label("L_r2")
    a("s_nop 15\ns_nop 7")
    for db in range(4):
        for qb in range(2):
            for i in range(16):
                a(f"v_mul_f32 v{O(db,qb)+i}, v{O(db,qb)+i}, v{val[qb]}")
    a(f"s_mov_b32 {sFlag}, 0\ns_nop 1")
    for t in range(1, NT):
        a(f"s_cmp_eq_u32 {sRet}, {t}\ns_cbranch_scc1 L_b2_{t}")
    a("s_endpgm")
    return a.text(256, 256, 163840, 384, 256)
if __name__ == "__main__":
    open("k1_nt.s", "w").write(gen(flags="nt"))
    open("k1.s", "w").write(gen(flags=""))
    open("k1_nt_st.s", "w").write(gen(flags="nt", stamps=1))
    open("k1_st.s", "w").write(gen(flags="", stamps=1))
```

```python
import sys, struct, math
from common import *
import hazard
def f2u(x): return struct.unpack('<I', struct.pack('<f', x))[0]

RING = 36864; QSZ = 16384
def gen(flags="nt", stamps=0, T=8.0, oflags=""):
    a = Asm()
    NT = 8
    vKa = [2+i for i in range(8)]; vVa = [10+i for i in range(4)]; vKd = [14+i for i in range(4)]; vVd = 18
    vmc = [19, 20]; vl = [21, 22]; val = [23, 24]; vmx = [25, 26]; vt = [27, 28, 29, 30, 31]
    P = lambda par, qb, s: 32 + par*16 + qb*8 + s*4
    S = lambda par, qb: 64 + par*32 + qb*16
    O = lambda db, qb: 128 + (db*2+qb)*16
    Qf = lambda qb, st: qb*32 + st*4
    Kf = lambda st: 64 + st*4
    Vf = lambda db, s: 96 + (db*2+s)*4
    vr = lambda b, n: f"v[{b}:{b+n-1}]"
    ar = lambda b, n: f"a[{b}:{b+n-1}]"
    sK, sV, sQ, sO = "s[16:19]", "s[20:23]", "s[24:27]", "s[28:31]"
    sRing, sC, sT, sFlag, sRet, sOff = "s32", "s33", "s34", "s35", "s36", "s37"
    nst = [0]
    def stamp():
        if stamps:
            a(f"s_memrealtime s[{60+2*nst[0]}:{61+2*nst[0]}]"); nst[0] += 1
    kslot = lambda j: 0 if j == 0 else (2*j-1) % 4
    vslot = lambda j: (2*j+2) % 4
    def dma(kind, t):
        out = []
        slot = kslot(t) if kind == "K" else vslot(t)
        for half in range(2):
            out.append(f"s_add_u32 m0, {sRing}, {slot*8192 + half*4096}\ns_movk_i32 {sOff}, {hex((t*8192 + half*4096) & 0xffff)}" if False else
                       f"s_add_u32 m0, {sRing}, {slot*8192 + half*4096}\ns_mov_b32 {sOff}, {t*8192 + half*4096}")
            for j in range(4):
                va = vKd[j] if kind == "K" else vVd
                out.append(f"buffer_load_dwordx4 v{va}, {sK if kind=='K' else sV}, {sOff} offen offset:{j*1024} {flags} lds")
        return out
    def kreads(t):
        return [f"ds_read_b128 {ar(Kf(st),4)}, v{vKa[st]} offset:{kslot(t)*8192}" for st in range(8)]
    def vreads(t):
        out = []
        for s in range(2):
            for db in range(4):
                for p in range(2):
                    out.append(f"ds_read_b64_tr_b16 {ar(Vf(db,s)+2*p,2)}, v{vVa[db]} offset:{vslot(t)*8192 + (16*s+8*p)*256}")
        return out
    def qk(t):
        par = t & 1
        return [f"v_mfma_f32_32x32x16_bf16 {vr(S(par,qb),16)}, {ar(Kf(st),4)}, {ar(Qf(qb,st),4)}, {'0' if st==0 else vr(S(par,qb),16)}"
                for qb in range(2) for st in range(8)]
    def pv(t, last=False):
        par = t & 1
        order = [(qb, s, db) for qb in range(2) for s in range(2) for db in range(4)]
        if last:
            order = [(qb, s, db) for (qb, db) in [(0,2),(0,3),(1,0),(1,1),(1,2),(1,3),(0,0),(0,1)] for s in range(2)]
        return [f"v_mfma_f32_32x32x16_bf16 {vr(O(db,qb),16)}, {ar(Vf(db,s),4)}, {vr(P(par,qb,s),4)}, {'0' if (t==0 and s==0) else vr(O(db,qb),16)}"
                for (qb, s, db) in order]
    def maxes(t, qb):
        b = S(t & 1, qb); m = vmx[qb]
        out = [f"v_max3_f32 v{m}, v{b}, v{b+1}, v{b+2}"]
        for i in range(3, 15, 2): out.append(f"v_max3_f32 v{m}, v{m}, v{b+i}, v{b+i+1}")
        out.append(f"v_max_f32 v{m}, v{m}, v{b+15}")
        return out
    def soft(t, qb):
        par = t & 1; b = S(par, qb); out = []
        for i in range(0, 16, 2):
            out.append(f"v_fma_f32 v{b+i}, v{b+i}, {sC}, -v{vmc[qb]}")
            out.append(f"v_fma_f32 v{b+i+1}, v{b+i+1}, {sC}, -v{vmc[qb]}")
            if i >= 2:
                j = i-2
                out.append(f"v_add_f32 v{vl[qb]}, v{vl[qb]}, v{b+j}")
            out.append(f"v_exp_f32 v{b+i}, v{b+i}")
            if i >= 2:
                out.append(f"v_add_f32 v{vl[qb]}, v{vl[qb]}, v{b+j+1}")
            out.append(f"v_exp_f32 v{b+i+1}, v{b+i+1}")
            if i >= 2:
                out.append(f"v_cvt_pk_bf16_f32 v{P(par,qb,0)+j//2}, v{b+j}, v{b+j+1}")
        j = 14
        out.append(f"v_add_f32 v{vl[qb]}, v{vl[qb]}, v{b+j}")
        out.append(f"v_add_f32 v{vl[qb]}, v{vl[qb]}, v{b+j+1}")
        out.append(f"v_cvt_pk_bf16_f32 v{P(par,qb,0)+j//2}, v{b+j}, v{b+j+1}")
        return out
    def cost(s):
        c = 0
        for x in s.split("\n"):
            c += 2 if x.startswith("v_exp") else (0.5 if x.startswith("s_") else 1)
        return c
    def interleave(mf, streams, lead=0):
        items = []
        for (lst, f0, f1) in streams:
            tot = sum(cost(x) for x in lst) or 1; acc = 0
            for k, x in enumerate(lst):
                pos = f0 + (f1-f0) * acc / tot
                acc += cost(x)
                items.append((pos, len(items), x))
        items.sort()
        n = len(mf); k = 0
        for i, m in enumerate(mf):
            a(m)
            while k < len(items) and items[k][0] < (i+1)/n:
                a(items[k][2]); k += 1
        while k < len(items):
            a(items[k][2]); k += 1

    stamp()
    a("s_cmp_ge_u32 s2, 256\ns_cbranch_scc1 L_end")
    a("s_load_dwordx4 s[4:7], s[0:1], 0\ns_load_dwordx4 s[8:11], s[0:1], 16")
    if stamps: a(f"s_load_dwordx2 s[58:59], s[0:1], {40 if stamps==1 else 32}")
    a("v_lshrrev_b32 v1, 6, v0\nv_and_b32 v0, 63, v0\nv_readfirstlane_b32 s3, v1")
    a("s_and_b32 s12, s2, 7\ns_lshr_b32 s13, s2, 5\ns_lshl_b32 s13, s13, 3\ns_or_b32 s12, s12, s13")
    a("s_lshr_b32 s13, s2, 3\ns_and_b32 s13, s13, 3\ns_lshl_b32 s14, s12, 2\ns_or_b32 s13, s13, s14\ns_lshl_b32 s13, s13, 14")
    a("s_lshl_b32 s14, s12, 18\ns_lshl_b32 s15, s3, 16\ns_add_u32 s14, s14, s15")
    t0, t1, t2, t3 = vt[0], vt[1], vt[2], vt[3]
    a(f"v_lshrrev_b32 v{t0}, 4, v0\nv_and_b32 v{t1}, 15, v0\nv_lshlrev_b32 v{t2}, 8, v{t0}")
    for j in range(4):
        a(f"v_add_u32 v{t3}, {4*j}, v{t0}\nv_xor_b32 v{t3}, v{t3}, v{t1}\nv_lshl_add_u32 v{vKd[j]}, v{t3}, 4, v{t2}")
    a(f"v_lshlrev_b32 v{t3}, 2, v{t0}\nv_xor_b32 v{t3}, v{t3}, v{t1}\nv_lshl_add_u32 v{vVd}, v{t3}, 4, v{t2}")
    a(f"s_mul_i32 {sRing}, s3, {RING}\ns_add_u32 {sRing}, {sRing}, {QSZ}")
    a("s_lshl_b32 s38, s3, 12")
    a("s_mov_b32 s18, 65536\ns_mov_b32 s19, 0x20000\ns_mov_b32 s22, 65536\ns_mov_b32 s23, 0x20000")
    a("s_mov_b32 s26, 16384\ns_mov_b32 s27, 0x20000\ns_mov_b32 s30, 16384\ns_mov_b32 s31, 0x20000")
    a("s_mov_b32 m0, s38")
    a("s_waitcnt lgkmcnt(0)")
    a("s_add_u32 s24, s4, s13\ns_addc_u32 s25, s5, 0")
    a("s_add_u32 s16, s6, s14\ns_addc_u32 s17, s7, 0")
    for j in range(4):
        a(f"buffer_load_dwordx4 v{vKd[j]}, {sQ}, s38 offen offset:{j*1024} {flags} lds")
    for x in dma("K", 0): a(x)
    a("s_add_u32 s20, s8, s14\ns_addc_u32 s21, s9, 0")
    a("s_add_u32 s28, s10, s13\ns_addc_u32 s29, s11, 0")
    for x in dma("K", 1) + dma("V", 0) + dma("K", 2): a(x)
    stamp()
    a(f"v_and_b32 v{t0}, 31, v0\nv_lshrrev_b32 v{t1}, 5, v0\nv_and_b32 v{t2}, 15, v0\nv_xor_b32 v{t2}, v{t2}, v{t1}\nv_lshlrev_b32 v{t0}, 8, v{t0}")
    a("s_lshr_b32 s39, s3, 1\ns_lshl_b32 s39, s39, 13")
    for st in range(8):
        a(f"v_xor_b32 v{t3}, {2*st}, v{t2}\nv_lshl_add_u32 v{vKa[st]}, v{t3}, 4, v{t0}")
    a(f"v_bfe_u32 v{t0}, v0, 2, 2\nv_lshl_add_u32 v{t1}, v{t1}, 2, v{t0}\nv_lshlrev_b32 v{t1}, 8, v{t1}")
    a(f"v_and_b32 v{t2}, 3, v0\nv_lshl_add_u32 v{t1}, v{t2}, 3, v{t1}\nv_bfe_u32 v{t2}, v0, 4, 1\nv_lshl_add_u32 v{t1}, v{t2}, 5, v{t1}")
    a(f"v_add_u32 v{t1}, {sRing}, v{t1}")
    a("s_and_b32 s40, s3, 1\ns_lshl_b32 s40, s40, 1")
    a(f"v_xor_b32 v{t0}, s40, v{t0}")
    for db in range(4):
        a(f"v_xor_b32 v{t3}, {db}, v{t0}\nv_lshl_add_u32 v{vVa[db]}, v{t3}, 6, v{t1}")
    a(f"s_mov_b32 {sC}, {hex(f2u(128**-0.5 * math.log2(math.e)))}\ns_mov_b32 {sT}, {hex(f2u(T))}\ns_mov_b32 {sFlag}, 0")
    a(f"v_mov_b32 v{vl[0]}, 0\nv_mov_b32 v{vl[1]}, 0")
    for st in range(8):
        a(f"v_xor_b32 v{64+st}, s39, v{vKa[st]}")
        a(f"v_xor_b32 v{72+st}, 0x2000, v{64+st}")
        a(f"v_add_u32 v{vKa[st]}, {sRing}, v{vKa[st]}")
    a("s_waitcnt vmcnt(32)\ns_barrier")
    for qb in range(2):
        for st in range(8):
            a(f"ds_read_b128 {ar(Qf(qb,st),4)}, v{64+8*qb+st}")
    a("s_waitcnt vmcnt(24)")
    stamp()
    for x in kreads(0): a(x)
    a("s_waitcnt lgkmcnt(0)")
    interleave(qk(0), [(dma("V", 1), 0.0, 0.5), (["s_waitcnt vmcnt(24)"], 0.99, 1.0)])
    for x in kreads(1): a(x)
    a("s_nop 3")
    for x in maxes(0, 0) + maxes(0, 1): a(x)
    for qb in range(2):
        a(f"v_mov_b32 v{vt[qb]}, v{vmx[qb]}")
    a("s_nop 1")
    for qb in range(2):
        a(f"v_permlane32_swap_b32 v{vt[qb]}, v{vmx[qb]}")
    for qb in range(2):
        a(f"v_max_f32 v{vmx[qb]}, v{vmx[qb]}, v{vt[qb]}")
    for qb in range(2):
        a(f"v_mul_f32 v{vmc[qb]}, {sC}, v{vmx[qb]}")
    for x in soft(0, 0): a(x)
    issued = ["K0", "K1", "V0", "K2", "V1"]
    def vm_for(name):
        return 8 * (len(issued) - 1 - issued.index(name))
    for t in range(NT):
        a.c(f"phase A({t})")
        d = []
        if t + 3 < NT: d = dma("K", t+3); issued.append(f"K{t+3}")
        w = [f"s_waitcnt vmcnt({vm_for(f'V{t}')})"]
        if t + 1 < NT:
            a("s_waitcnt lgkmcnt(0)")
            interleave(qk(t+1), [(soft(t, 1), 0.0, 0.95), (d, 0.0, 0.4), (w + vreads(t), 0.42, 0.9)])
        else:
            sf = soft(t, 1)
            for x in sf[:20]: a(x)
            for x in w + vreads(t): a(x)
            for x in sf[20:]: a(x)
            stamp()
        a.c(f"phase B({t})")
        a("s_waitcnt lgkmcnt(0)")
        if t + 1 < NT:
            d = []
            if t + 2 < NT: d = dma("V", t+2); issued.append(f"V{t+2}")
            kr = []
            if t + 2 < NT: kr = [f"s_waitcnt vmcnt({vm_for(f'K{t+2}')})"] + kreads(t+2)
            chk = [f"v_fma_f32 v{vt[0]}, v{vmx[0]}, {sC}, -v{vmc[0]}",
                   f"v_fma_f32 v{vt[1]}, v{vmx[1]}, {sC}, -v{vmc[1]}",
                   f"v_max_f32 v{vt[0]}, v{vt[0]}, v{vt[1]}",
                   f"v_cmp_lt_f32 vcc, {sT}, v{vt[0]}\ns_cbranch_vccnz L_r1_{t+1}\nL_b1_{t+1}:"]
            v = maxes(t+1, 0) + maxes(t+1, 1) + chk + soft(t+1, 0)
            interleave(pv(t), [(v, 0.0, 1.0), (d, 0.0, 0.4), (kr, 0.5, 0.9)])
            a(f"s_cmp_lg_u32 {sFlag}, 0\ns_cbranch_scc1 L_r2_{t+1}")
            a.label(f"L_b2_{t+1}")
        else:
            m = pv(t, last=True)
            pre = []
            for qb in range(2): pre.append(f"v_mov_b32 v{vt[qb]}, v{vl[qb]}")
            pre.append(f"v_lshlrev_b32 v{vt[4]}, 4, v0")
            for qb in range(2): pre.append(f"v_permlane32_swap_b32 v{vt[qb]}, v{vl[qb]}")
            for qb in range(2): pre.append(f"v_add_f32 v{vl[qb]}, v{vl[qb]}, v{vt[qb]}")
            pre.append(f"v_cmp_gt_u32 vcc, 32, v0")
            pre.append(f"v_add_u32 v{vt[4]}, {sRing}, v{vt[4]}")
            pre.append(f"v_lshlrev_b32 v{vt[0]}, 3, v0")
            pre.append(f"v_cndmask_b32 v64, v{vmc[1]}, v{vmc[0]}, vcc")
            pre.append(f"v_cndmask_b32 v65, v{vl[1]}, v{vl[0]}, vcc")
            pre.append(f"v_add_u32 v{vt[0]}, {sRing}, v{vt[0]}")
            pre.append(f"ds_write_b64 v{vt[0]}, v[64:65] offset:32768")
            tiles = [(0,2),(0,3),(1,0),(1,1),(1,2),(1,3)]
            def wr(k):
                qb, db = tiles[k]; x = qb*2 + (db >> 1)
                return [f"ds_write_b128 v{vt[4]}, {vr(O(db,qb)+4*i,4)} offset:{(x-1)*8192 + (db&1)*4096 + i*1024}" for i in range(4)]
            for i, mm in enumerate(m):
                a(mm)
                if i < 4:
                    for x in pre[i*4:(i+1)*4]: a(x)
                elif i >= 5 and i % 2 == 1:
                    k = (i - 5) // 2
                    for x in wr(k): a(x)
    a.c("epilogue")
    a("s_waitcnt lgkmcnt(0)\ns_barrier")
    stamp()
    for x in (1, 2, 3):
        a(f"s_xor_b32 s40, s3, {x}\ns_mul_i32 s40, s40, {RING}\ns_add_u32 s{40+x}, s40, {QSZ}")
    a(f"v_and_b32 v{vt[0]}, 31, v0\nv_lshlrev_b32 v{vt[1]}, 3, v{vt[0]}\nv_lshlrev_b32 v{vt[2]}, 4, v0")
    for x in (1, 2, 3):
        a(f"v_add_u32 v{2+x}, s{40+x}, v{vt[1]}\nv_add_u32 v{6+x}, s{40+x}, v{vt[2]}")
    for x in (1, 2, 3):
        a(f"ds_read_b64 v[{10+2*x}:{11+2*x}], v{2+x} offset:{32768 + (x>>1)*256}")
    for x in (1, 2, 3):
        for i in range(8):
            a(f"ds_read_b128 {vr(32+(x-1)*32+4*i,4)}, v{6+x} offset:{(x-1)*8192 + i*1024}")
    a(f"s_lshr_b32 s40, s3, 1\ns_lshl_b32 s40, s40, 13\ns_and_b32 s44, s3, 1\ns_lshl_b32 s44, s44, 7\ns_add_u32 s40, s40, s44")
    a(f"v_lshlrev_b32 v{vt[0]}, 8, v{vt[0]}\nv_lshrrev_b32 v{vt[1]}, 5, v0\nv_lshl_add_u32 v{vt[0]}, v{vt[1]}, 4, v{vt[0]}")
    a("s_waitcnt lgkmcnt(15)")
    a("s_waitcnt lgkmcnt(15)")
    a(f"v_max3_f32 v2, v12, v14, v16\nv_max_f32 v2, v2, v{vmc[0]}")
    a(f"v_sub_f32 v10, v{vmc[0]}, v2\nv_sub_f32 v12, v12, v2\nv_sub_f32 v14, v14, v2\nv_sub_f32 v16, v16, v2")
    a("v_exp_f32 v10, v10\nv_exp_f32 v12, v12\nv_exp_f32 v14, v14\nv_exp_f32 v16, v16")
    a(f"v_mul_f32 v3, v10, v{vl[0]}\nv_fmac_f32 v3, v12, v13\nv_fmac_f32 v3, v14, v15\nv_fmac_f32 v3, v16, v17")
    a("v_rcp_f32 v3, v3\ns_nop 0")
    a("v_mul_f32 v10, v10, v3\nv_mul_f32 v12, v12, v3\nv_mul_f32 v14, v14, v3\nv_mul_f32 v16, v16, v3")
    own = [O(0,0)+i for i in range(16)] + [O(1,0)+i for i in range(16)]
    for i in range(0, 32, 2):
        a(f"v_pk_mul_f32 {vr(own[i],2)}, {vr(own[i],2)}, v[10:11] op_sel_hi:[1,0]")
    for x in (1, 2, 3):
        a(f"s_waitcnt lgkmcnt({min(15, (3-x)*8)})")
        for i in range(0, 32, 2):
            a(f"v_pk_fma_f32 {vr(own[i],2)}, {vr(32+(x-1)*32+i,2)}, v[{10+2*x}:{11+2*x}], {vr(own[i],2)} op_sel_hi:[1,0,1]")
    for i in range(0, 32, 2):
        a(f"v_cvt_pk_bf16_f32 v{32+i//2}, v{own[i]}, v{own[i+1]}")
    a("s_nop 0")
    for g in range(4):
        a(f"v_permlane32_swap_b32 v{32+4*g}, v{34+4*g}\nv_permlane32_swap_b32 v{33+4*g}, v{35+4*g}")
    for g in range(4):
        a(f"buffer_store_dwordx4 {vr(32+4*g,4)}, v{vt[0]}, {sO}, s40 offen offset:{g*32} {oflags}")
    if stamps:
        stamp()
        a("s_waitcnt vmcnt(0)")
        stamp()
        a("s_waitcnt lgkmcnt(0)")
        NS = nst[0]
        a(f"s_lshl_b32 s44, s2, 2\ns_add_u32 s44, s44, s3\ns_mul_i32 s44, s44, {NS*8}")
        a("s_mov_b32 s12, s58\ns_mov_b32 s13, s59\ns_mov_b32 s14, 0x100000\ns_mov_b32 s15, 0x20000")
        a("v_mov_b32 v5, 0\ns_mov_b64 exec, 1")
        for s in range(NS):
            if stamps == 1:
                a(f"v_mov_b32 v6, s{60+2*s}\nv_mov_b32 v7, s{61+2*s}")
                a(f"buffer_store_dwordx2 v[6:7], v5, s[12:15], s44 offen offset:{8*s}\ns_nop 1")
            else:
                a("s_mov_b32 s14, 256")
                a(f"v_mov_b32 v6, s{60+2*s}\nv_not_b32 v7, v6")
                a(f"buffer_atomic_umax v6, v5, s[12:15], 0 offen offset:{8*s}\nbuffer_atomic_umax v7, v5, s[12:15], 0 offen offset:{8*s+4}\ns_nop 1")
        print("stamps", NS)
    a.label("L_end")
    a("s_endpgm")
    a.l = hazard.fix(a.l)
    for t in range(1, NT):
        a.label(f"L_r1_{t}"); a(f"s_mov_b32 {sRet}, {t}\ns_branch L_r1")
        a.label(f"L_r2_{t}"); a(f"s_mov_b32 {sRet}, {t}\ns_branch L_r2")
    a.label("L_r1")
    for qb in range(2): a(f"v_mov_b32 v{vt[qb]}, v{vmx[qb]}")
    a("s_nop 1")
    for qb in range(2): a(f"v_permlane32_swap_b32 v{vt[qb]}, v{vmx[qb]}")
    for qb in range(2): a(f"v_max_f32 v{vmx[qb]}, v{vmx[qb]}, v{vt[qb]}")
    for qb in range(2): a(f"v_mul_f32 v{vmx[qb]}, {sC}, v{vmx[qb]}")
    for qb in range(2): a(f"v_max_f32 v{vmx[qb]}, v{vmx[qb]}, v{vmc[qb]}")
    for qb in range(2): a(f"v_sub_f32 v{val[qb]}, v{vmc[qb]}, v{vmx[qb]}")
    for qb in range(2): a(f"v_exp_f32 v{val[qb]}, v{val[qb]}")
    for qb in range(2): a(f"v_mov_b32 v{vmc[qb]}, v{vmx[qb]}")
    for qb in range(2): a(f"v_mul_f32 v{vl[qb]}, v{vl[qb]}, v{val[qb]}")
    a(f"s_mov_b32 {sFlag}, 1")
    for t in range(1, NT):
        a(f"s_cmp_eq_u32 {sRet}, {t}\ns_cbranch_scc1 L_b1_{t}")
    a("s_endpgm")
    a.label("L_r2")
    a("s_nop 15\ns_nop 7")
    for db in range(4):
        for qb in range(2):
            for i in range(16):
                a(f"v_mul_f32 v{O(db,qb)+i}, v{O(db,qb)+i}, v{val[qb]}")
    a(f"s_mov_b32 {sFlag}, 0\ns_nop 1")
    for t in range(1, NT):
        a(f"s_cmp_eq_u32 {sRet}, {t}\ns_cbranch_scc1 L_b2_{t}")
    a("s_endpgm")
    return a.text(256, 256, 163840, 384, 256)
if __name__ == "__main__":
    open("k1_nt.s", "w").write(gen(flags="nt"))
    open("k1.s", "w").write(gen(flags=""))
    open("k1_nt_st.s", "w").write(gen(flags="nt", stamps=1))
    open("k1_st.s", "w").write(gen(flags="", stamps=1))
    open("k1_dbg.s", "w").write(gen(flags="", stamps=2))
    open("k1_nt_dbg.s", "w").write(gen(flags="nt", stamps=2))
```
